```python
import torch

def _softmax(x, axis=-1):
    return torch.softmax(x, dim=axis)
def _gelu(x):
    return torch.nn.functional.gelu(x, approximate="tanh")
def _silu(x):
    return torch.nn.functional.silu(x)
def _sigmoid(x):
    return torch.sigmoid(x)
def _layernorm(x, axis=-1, eps=1e-5):
    m = x.mean(dim=axis, keepdim=True)
    v = x.var(dim=axis, keepdim=True, unbiased=False)
    return (x - m) / torch.sqrt(v + eps)
def _scatter_add(tgt, idx, src, axis=0):
    return tgt.clone().index_add_(axis, idx, src)
def _segment_sum(src, seg, n):
    out = torch.zeros((n,) + src.shape[1:], dtype=src.dtype)
    return out.index_add_(0, seg, src)
def _pad(x, pw):
    flat = tuple(v for pair in reversed(pw) for v in pair)
    return torch.nn.functional.pad(x, flat)

kernel_name = 'sequential_preLN__softmax_full_mha__dense_activation_relu__prompt'

def setup_inputs():

    _w = (lambda a: (lambda t: t.to(torch.bfloat16) if t.is_floating_point() else t)(torch.as_tensor(a)))
    def _A_setup():
        B, S, D = 1, 2048, 512
        return {
            "x": _w((lambda *s: torch.randn(*s, dtype=torch.bfloat16) * 0.05)(B, S, D)),
            "wqkv": _w((lambda *s: torch.randn(*s, dtype=torch.bfloat16) * 0.05)(D, 3 * D)),
            "wo": _w((lambda *s: torch.randn(*s, dtype=torch.bfloat16) * 0.05)(D, D)),
        }
    _A_in = _A_setup()

    def _B_setup():
        B, S, D, Dff = 1, 2048, 512, 1792
        return {
            "x": _w((lambda *s: torch.randn(*s, dtype=torch.bfloat16) * 0.05)(B, S, D)),
            "w1": _w((lambda *s: torch.randn(*s, dtype=torch.bfloat16) * 0.05)(D, Dff)),
            "w2": _w((lambda *s: torch.randn(*s, dtype=torch.bfloat16) * 0.05)(Dff, D)),
        }
    _B_in = _B_setup()

    return {
        "A_x": _A_in["x"],
        "A_wqkv": _A_in["wqkv"],
        "A_wo": _A_in["wo"],
        "B_x": _B_in["x"],
        "B_w1": _B_in["w1"],
        "B_w2": _B_in["w2"],
    }

def reference(A_x, A_wqkv, A_wo, B_x, B_w1, B_w2):
    def _A_ref(x, wqkv, wo):
        B, S, D = x.shape
        H = 32; Dh = D // H
        qkv = (lambda x, *d: x.permute(*d))((x @ wqkv).reshape(B, S, 3, H, Dh), 2, 0, 3, 1, 4)
        q, k, v = qkv[0], qkv[1], qkv[2]
        scale = Dh ** -0.5
        scores = torch.einsum("bhqd,bhkd->bhqk", q, k) * scale
        p = _softmax(scores, axis=-1)
        o = torch.einsum("bhqk,bhkd->bhqd", p, v)
        return (lambda x, *d: x.permute(*d))(o, 0, 2, 1, 3).reshape(B, S, D) @ wo

    def _B_ref(x, w1, w2):
        h = torch.einsum("bsd,df->bsf", x, w1)
        zero = torch.zeros_like(h)
        h = torch.maximum(h, zero)
        return torch.einsum("bsf,fd->bsd", h, w2)

    x = A_x
    h = x + _A_ref(_layernorm(x, axis=-1), A_wqkv, A_wo)
    h2 = h + _B_ref(_layernorm(h, axis=-1), B_w1, B_w2)
    return h2
```

```python
import re

class R:
    __slots__ = ("k", "i", "n")
    def __init__(self, k, i, n=1):
        self.k, self.i, self.n = k, i, n
    def __str__(self):
        if self.k == 'x':
            return self.i
        if self.n == 1:
            return f"{self.k}{self.i}"
        return f"{self.k}[{self.i}:{self.i + self.n - 1}]"
    __repr__ = __str__
    def __getitem__(self, idx):
        if isinstance(idx, slice):
            a = idx.start or 0
            b = self.n if idx.stop is None else idx.stop
            assert 0 <= a < b <= self.n, (self, idx)
            return R(self.k, self.i + a, b - a)
        assert 0 <= idx < self.n, (self, idx)
        return R(self.k, self.i + idx, 1)
    def __len__(self):
        return self.n
    def regs(self):
        if self.k == 'x':
            m = {"vcc": ["vcc"], "vcc_lo": ["vcc"], "vcc_hi": ["vcc"], "exec": ["exec"], "exec_lo": ["exec"],
                 "exec_hi": ["exec"], "m0": ["m0"], "scc": ["scc"]}
            return set(m.get(self.i, []))
        return {(self.k, self.i + j) for j in range(self.n)}

VCC = R('x', 'vcc'); EXEC = R('x', 'exec'); M0 = R('x', 'm0'); OFF = R('x', 'off')
EXEC_LO = R('x', 'exec_lo'); EXEC_HI = R('x', 'exec_hi'); VCC_LO = R('x', 'vcc_lo')

class Neg:
    def __init__(self, r): self.r = r
    def __str__(self): return f"-{self.r}"
    def regs(self): return self.r.regs()
class Abs:
    def __init__(self, r): self.r = r
    def __str__(self): return f"|{self.r}|"
    def regs(self): return self.r.regs()

TRANS = ("v_exp_f32", "v_log_f32", "v_rcp_f32", "v_rsq_f32", "v_sqrt_f32", "v_sin_f32", "v_cos_f32", "v_rcp_iflag_f32")
NODST_S = ("s_cmp", "s_cbranch", "s_branch", "s_waitcnt", "s_barrier", "s_nop", "s_endpgm", "s_setprio", "s_sleep",
           "s_bitcmp", "s_sendmsg", "s_setreg", "s_set_gpr")

def fmt(o):
    if isinstance(o, float):
        import struct
        if o in (0.5, 1.0, 2.0, 4.0, -0.5, -1.0, -2.0, -4.0):
            return repr(o)
        if o == 0.0:
            return "0"
        return "0x%08x" % struct.unpack("<I", struct.pack("<f", o))[0]
    if isinstance(o, int):
        if -16 <= o <= 64:
            return str(o)
        return "0x%x" % (o & 0xffffffff)
    return str(o)

def rset(o):
    return o.regs() if hasattr(o, "regs") else set()

class Ins:
    __slots__ = ("op", "ops", "mods", "cls", "dst", "src", "srcC", "passes", "label", "target", "comment",
                 "stdata", "dpp", "nopn", "lanesel", "D")
    def __init__(self, op, ops=(), mods="", comment=""):
        self.op, self.ops, self.mods, self.comment = op, list(ops), mods, comment
        self.label = None; self.target = None; self.passes = 0
        self.dst = set(); self.src = set(); self.srcC = set(); self.stdata = set(); self.dpp = False
        self.nopn = 1; self.lanesel = set(); self.D = None
        self.classify()
    def classify(self):
        op, ops = self.op, self.ops
        if op == "LABEL":
            self.cls = "label"; self.nopn = 0; return
        if op == "RAW":
            self.cls = "raw"; self.nopn = 0; return
        if op.startswith("v_mfma"):
            self.cls = "mfma"
            self.passes = 8 if "32x32x16" in op else 4 if "16x16x32" in op else None
            assert self.passes, op
            self.dst = rset(ops[0]); self.src = rset(ops[1]) | rset(ops[2]); self.srcC = rset(ops[3])
            self.D = str(ops[0])
            return
        if op.startswith("v_"):
            self.cls = "trans" if op.split("_e")[0] in TRANS or op in TRANS else "valu"
            if op.startswith("v_cmpx"):
                self.dst = {"exec"} | rset(ops[0]) if str(ops[0]) in ("vcc", "exec") or (hasattr(ops[0], 'k') and ops[0].k == 's' and len(ops) == 3) else {"exec"}
                self.src = set().union(*[rset(o) for o in ops[-2:]])
            elif op.startswith("v_permlane32_swap") or op.startswith("v_permlane16_swap") or op.startswith("v_swap"):
                self.dst = rset(ops[0]) | rset(ops[1]); self.src = set(self.dst); self.dpp = True
            elif op.startswith(("v_add_co", "v_sub_co", "v_subrev_co", "v_addc_co", "v_subb_co")):
                self.dst = rset(ops[0]) | rset(ops[1]); self.src = set().union(*[rset(o) for o in ops[2:]])
            elif op == "v_nop":
                pass
            else:
                self.dst = rset(ops[0]); self.src = set().union(*[rset(o) for o in ops[1:]]) if len(ops) > 1 else set()
                if op.startswith(("v_fmac", "v_mac", "v_dot2c", "v_pk_fmac", "v_writelane")):
                    self.src |= self.dst
                if op.startswith("v_cndmask") and len(ops) == 3:
                    self.src |= {"vcc"}
                if op.startswith(("v_readlane", "v_writelane")):
                    self.lanesel = rset(ops[2])
                if op.startswith("v_permlane"):
                    self.dpp = True
            if "row_" in self.mods or "quad_perm" in self.mods or "wave_" in self.mods or "dpp" in op:
                self.dpp = True
                if "bound_ctrl" not in self.mods:
                    self.src |= self.dst
            return
        if op.startswith("ds_"):
            self.cls = "ds"
            if op.startswith(("ds_read", "ds_bpermute", "ds_permute", "ds_swizzle")) or "_rtn" in op:
                self.dst = rset(ops[0]); self.src = set().union(*[rset(o) for o in ops[1:]])
            else:
                self.src = set().union(*[rset(o) for o in ops])
            return
        if op.startswith(("buffer_", "global_", "flat_")):
            self.cls = "vmem"
            lds = re.search(r"\blds\b", self.mods) is not None or "_lds_" in op
            if "load" in op and not lds:
                self.dst = rset(ops[0]); self.src = set().union(*[rset(o) for o in ops[1:]])
            elif "atomic" in op and ("sc0" in self.mods):
                self.dst = rset(ops[0]); self.src = set().union(*[rset(o) for o in ops])
            else:
                self.src = set().union(*[rset(o) for o in ops])
                if lds:
                    self.src |= {"m0"}; self.cls = "vmem_lds"
                if "store" in op and ("x3" in op or "x4" in op):
                    self.stdata = rset(ops[0]) if op.startswith("buffer") else rset(ops[1])
            return
        if op.startswith("s_"):
            if op.startswith(("s_load", "s_buffer_load", "s_memtime", "s_memrealtime")):
                self.cls = "smem"; self.dst = rset(ops[0]); self.src = set().union(*[rset(o) for o in ops[1:]]) if len(ops) > 1 else set()
                return
            self.cls = "salu"
            if op == "s_nop":
                self.nopn = ops[0] + 1
            if op.startswith(("s_cbranch", "s_branch")):
                self.target = ops[0]
                return
            if op.startswith(NODST_S):
                self.src = set().union(*[rset(o) for o in ops]) if ops else set()
                return
            self.dst = rset(ops[0]); self.src = set().union(*[rset(o) for o in ops[1:]]) if len(ops) > 1 else set()
            if "saveexec" in op:
                self.dst |= {"exec"}
            return
        raise ValueError("unknown op " + op)
    def text(self):
        if self.op == "LABEL":
            return f"{self.label}:"
        if self.op == "RAW":
            return self.mods
        s = "  " + self.op
        if self.ops:
            s += " " + ", ".join(fmt(o) for o in self.ops)
        if self.mods:
            s += " " + self.mods
        if self.comment:
            s += "  ; " + self.comment
        return s

def is_v(r): return isinstance(r, tuple) and r[0] in "va"
def is_s(r): return (isinstance(r, tuple) and r[0] == 's') or r == "vcc"

def need(p, c):
    n = 0
    pv = p.cls in ("valu", "trans")
    cv = c.cls in ("valu", "trans")
    cmem = c.cls in ("vmem", "vmem_lds", "ds")
    if pv:
        pdv = {r for r in p.dst if is_v(r)}
        pds = {r for r in p.dst if is_s(r)}
        if c.cls == "mfma":
            if pdv & (c.src | c.srcC): n = max(n, 2)
            if "exec" in p.dst: n = max(n, 4)
        if cv:
            if p.cls == "trans" and c.cls != "trans" and pdv & c.src: n = max(n, 1)
            if c.op.startswith(("v_readlane", "v_readfirstlane")) and pdv & c.src: n = max(n, 1)
            if c.dpp and pdv & c.src: n = max(n, 2)
            if c.dpp and "exec" in p.dst: n = max(n, 5)
            if pds & c.src: n = max(n, 2)
            if pds & c.lanesel: n = max(n, 4)
            if "exec" in p.dst and c.op.startswith(("v_readlane", "v_readfirstlane", "v_writelane")): n = max(n, 4)
            if "exec" in p.dst and "exec" in c.src: n = max(n, 2)
            if ("op_sel" in p.mods or "sdwa" in p.op or "dst_sel" in p.mods) and pdv & (c.src | c.dst): n = max(n, 1)
        if c.cls in ("vmem", "vmem_lds") and pds & c.src: n = max(n, 5)
    if p.cls == "mfma":
        big = p.passes + 4
        if c.cls == "mfma":
            if p.dst & c.src: n = max(n, big)
            if p.dst & c.srcC:
                if not (p.dst == c.srcC and p.passes == c.passes): n = max(n, p.passes + 2)
            elif p.dst & c.dst and not (p.passes <= c.passes):
                n = max(n, big)
        if (cv or cmem) and p.dst & (c.src | c.dst): n = max(n, big)
        if cv and p.srcC & c.dst: n = max(n, p.passes - 1)
    if p.cls == "salu" and "m0" in p.dst and c.cls == "vmem_lds": n = max(n, 1)
    if p.stdata:
        if cv and p.stdata & c.dst: n = max(n, 2)
        elif p.stdata & c.dst: n = max(n, 1)
    return n

MAXWS = 12

def pad_hazards(code):
    total = 0
    for _pass in range(6):
        changed = False
        labels = {ins.label: i for i, ins in enumerate(code) if ins.op == "LABEL"}
        jumps = {}
        for i, ins in enumerate(code):
            if ins.target is not None:
                jumps.setdefault(str(ins.target), []).append(i)
        def preds(i):
            out = []
            if i > 0 and not (code[i - 1].op in ("s_branch", "s_endpgm")):
                out.append(i - 1)
            if code[i].op == "LABEL":
                out += jumps.get(code[i].label, [])
            return out
        i = 0
        new = []
        inserts = {}
        for i, c in enumerate(code):
            if c.cls in ("label", "raw", "salu", "smem"):
                continue
            worst = 0
            stack = [(j, 0) for j in preds(i)]
            seen = {}
            while stack:
                j, d = stack.pop()
                if seen.get(j, 99) <= d: continue
                seen[j] = d
                p = code[j]
                if p.cls not in ("label", "raw"):
                    nn = need(p, c)
                    if nn > d: worst = max(worst, nn - d)
                d2 = d + p.nopn + inserts.get(j, 0)
                if d2 < MAXWS:
                    for q in preds(j): stack.append((q, d2))
            if worst:
                inserts[i] = worst
        if not inserts:
            break
        out = []
        for i, c in enumerate(code):
            if i in inserts:
                n = inserts[i]; total += 1
                if out and out[-1].op == "s_nop" and out[-1].ops[0] + n <= 15:
                    out[-1] = Ins("s_nop", [out[-1].ops[0] + n])
                else:
                    out.append(Ins("s_nop", [n - 1], comment="hz"))
            out.append(c)
        code[:] = out
    return total

class Kernel:
    def __init__(self, name, grid, block, lds):
        self.name, self.grid, self.block, self.lds = name, grid, block, lds
        self.code = []
        self.vfree = [True] * 256; self.afree = [True] * 256; self.sfree = [True] * 102
        self.vfree[0] = False
        for j in range(3): self.sfree[j] = False
        self.vmax = 1; self.amax = 0; self.smax = 3
        self.nlab = 0
        self.nds = 0; self.nvm = 0; self.ds_done = 0; self.vm_done = 0
    def _alloc(self, free, n, align, k):
        for i in range(0, len(free) - n + 1, align):
            if all(free[i:i + n]):
                for j in range(i, i + n): free[j] = False
                return R(k, i, n)
        raise RuntimeError(f"out of {k} regs in {self.name}")
    def v(self, n=1, align=None):
        r = self._alloc(self.vfree, n, align or (2 if n > 1 else 1), 'v'); self.vmax = max(self.vmax, r.i + n); return r
    def a(self, n=1, align=None):
        r = self._alloc(self.afree, n, align or (2 if n > 1 else 1), 'a'); self.amax = max(self.amax, r.i + n); return r
    def s(self, n=1, align=None):
        r = self._alloc(self.sfree, n, align or (4 if n >= 4 else 2 if n == 2 else 1), 's'); self.smax = max(self.smax, r.i + n); return r
    def free(self, *rs):
        for r in rs:
            f = {'v': self.vfree, 'a': self.afree, 's': self.sfree}[r.k]
            for j in range(r.i, r.i + r.n):
                assert not f[j]; f[j] = True
    def __call__(self, op, *ops, mods="", c=""):
        ins = Ins(op, ops, mods, c); self.code.append(ins)
        if ins.cls == "ds": self.nds += 1
        if ins.cls in ("vmem", "vmem_lds"): self.nvm += 1
        return ins
    def need(self, ds=None, vm=None):
        a = b = None
        if ds is not None and ds > self.ds_done:
            a = min(15, self.nds - ds); self.ds_done = self.nds - a
        if vm is not None and vm > self.vm_done:
            b = min(63, self.nvm - vm); self.vm_done = self.nvm - b
        if a is not None or b is not None:
            self.wait(vm=b, lgkm=a)
    def label(self, name=None):
        if name is None:
            name = f"{self.name}_L{self.nlab}"; self.nlab += 1
        ins = Ins("LABEL"); ins.label = name; self.code.append(ins); return name
    def newlabel(self, tag="L"):
        self.nlab += 1; return f"{self.name}_{tag}{self.nlab}"
    def raw(self, text):
        self.code.append(Ins("RAW", mods=text))
    def wait(self, vm=None, lgkm=None):
        parts = []
        if vm is not None: assert 0 <= vm <= 63; parts.append(f"vmcnt({vm})")
        if lgkm is not None: assert 0 <= lgkm <= 15; parts.append(f"lgkmcnt({lgkm})")
        self("s_waitcnt", mods=" ".join(parts))
    def srd(self, srd, base_pair, size, off=0):
        if off:
            self("s_add_u32", srd[0], base_pair[0], off)
            self("s_addc_u32", srd[1], base_pair[1], 0)
        elif srd[0].i != base_pair[0].i:
            self("s_mov_b32", srd[0], base_pair[0]); self("s_mov_b32", srd[1], base_pair[1])
        self("s_mov_b32", srd[2], size)
        self("s_mov_b32", srd[3], 0x00020000)
    def stamp(self, real=False):
        if not getattr(self, "prof", False): return
        if not hasattr(self, "stamps"): self.stamps = []
        r = self.s(2); self.stamps.append(r)
        self("s_memrealtime" if real else "s_memtime", r)
    def dump_stamps(self, s_w, wgsel=None):
        if not getattr(self, "prof", False): return
        p = self.s(2); a = self.v(); d = self.v()
        skip = self.newlabel("nodump")
        self("s_cmp_lg_u32", R('s', 2), self.prof_wg if wgsel is None else wgsel)
        self("s_cbranch_scc1", skip)
        woff = getattr(self, "prof_woff", 0)
        if woff: self("s_sub_u32", s_w, s_w, woff)
        self("s_cmp_gt_u32", s_w, 3)
        self("s_cbranch_scc1", skip)
        self("s_load_dwordx2", p, R('s', 0, 2), 56)
        self("s_lshl_b32", s_w, s_w, 6)
        self("v_mov_b32", a, s_w)
        self.wait(lgkm=0)
        for i, r in enumerate(self.stamps[:16]):
            self("v_mov_b32", d, r[0])
            self("global_store_dword", a, d, p, mods=f"offset:{4 * i}")
        self.label(skip)
    def finish(self):
        n = pad_hazards(self.code)
        body = "\n".join(i.text() for i in self.code)
        acc = (self.vmax + 3) // 4 * 4
        nfv = acc + self.amax if self.amax else self.vmax
        text = f".globl {self.name}\n.p2align 8\n.type {self.name},@function\n{self.name}:\n{body}\n"
        desc = (f".p2align 6\n.amdhsa_kernel {self.name}\n  .amdhsa_next_free_vgpr {nfv}\n  .amdhsa_next_free_sgpr 102\n"
                f"  .amdhsa_accum_offset {acc}\n  .amdhsa_group_segment_fixed_size 0\n  .amdhsa_kernarg_size 72\n"
                f"  .amdhsa_user_sgpr_count 2\n  .amdhsa_user_sgpr_kernarg_segment_ptr 1\n"
                f"  .amdhsa_system_sgpr_workgroup_id_x 1\n.end_amdhsa_kernel\n")
        launch = f"; @launch kernel={self.name} grid=({self.grid},1,1) block=({self.block},1,1) lds={self.lds}"
        info = f"{self.name}: vgpr={self.vmax} agpr={self.amax} sgpr={self.smax} instrs={len(self.code)} nops={n}"
        return text, desc, launch, info

HEADER = """; Kernarg layout for this problem (72 bytes, ptrs only, base s[0:1]):
"""

def build_file(kernels, path):
    parts = [k.finish() for k in kernels]
    s = HEADER + "\n".join(p[2] for p in parts) + "\n"
    s += '.amdgcn_target "amdgcn-amd-amdhsa--gfx950"\n.text\n'
    s += "".join(p[0] for p in parts)
    s += '.section .rodata,"a"\n' + "".join(p[1] for p in parts)
    open(path, "w").write(s)
    for p in parts: print(p[3])
```

```python
import re

class R:
    __slots__ = ("k", "i", "n")
    def __init__(self, k, i, n=1):
        self.k, self.i, self.n = k, i, n
    def __str__(self):
        if self.k == 'x':
            return self.i
        if self.n == 1:
            return f"{self.k}{self.i}"
        return f"{self.k}[{self.i}:{self.i + self.n - 1}]"
    __repr__ = __str__
    def __getitem__(self, idx):
        if isinstance(idx, slice):
            a = idx.start or 0
            b = self.n if idx.stop is None else idx.stop
            assert 0 <= a < b <= self.n, (self, idx)
            return R(self.k, self.i + a, b - a)
        assert 0 <= idx < self.n, (self, idx)
        return R(self.k, self.i + idx, 1)
    def __len__(self):
        return self.n
    def regs(self):
        if self.k == 'x':
            m = {"vcc": ["vcc"], "vcc_lo": ["vcc"], "vcc_hi": ["vcc"], "exec": ["exec"], "exec_lo": ["exec"],
                 "exec_hi": ["exec"], "m0": ["m0"], "scc": ["scc"]}
            return set(m.get(self.i, []))
        return {(self.k, self.i + j) for j in range(self.n)}

VCC = R('x', 'vcc'); EXEC = R('x', 'exec'); M0 = R('x', 'm0'); OFF = R('x', 'off')
EXEC_LO = R('x', 'exec_lo'); EXEC_HI = R('x', 'exec_hi'); VCC_LO = R('x', 'vcc_lo')

class Neg:
    def __init__(self, r): self.r = r
    def __str__(self): return f"-{self.r}"
    def regs(self): return self.r.regs()
class Abs:
    def __init__(self, r): self.r = r
    def __str__(self): return f"|{self.r}|"
    def regs(self): return self.r.regs()

TRANS = ("v_exp_f32", "v_log_f32", "v_rcp_f32", "v_rsq_f32", "v_sqrt_f32", "v_sin_f32", "v_cos_f32", "v_rcp_iflag_f32")
NODST_S = ("s_cmp", "s_cbranch", "s_branch", "s_waitcnt", "s_barrier", "s_nop", "s_endpgm", "s_setprio", "s_sleep",
           "s_bitcmp", "s_sendmsg", "s_setreg", "s_set_gpr")

def fmt(o):
    if isinstance(o, float):
        import struct
        if o in (0.5, 1.0, 2.0, 4.0, -0.5, -1.0, -2.0, -4.0):
            return repr(o)
        if o == 0.0:
            return "0"
        return "0x%08x" % struct.unpack("<I", struct.pack("<f", o))[0]
    if isinstance(o, int):
        if -16 <= o <= 64:
            return str(o)
        return "0x%x" % (o & 0xffffffff)
    return str(o)

def rset(o):
    return o.regs() if hasattr(o, "regs") else set()

class Ins:
    __slots__ = ("op", "ops", "mods", "cls", "dst", "src", "srcC", "passes", "label", "target", "comment",
                 "stdata", "dpp", "nopn", "lanesel", "D")
    def __init__(self, op, ops=(), mods="", comment=""):
        self.op, self.ops, self.mods, self.comment = op, list(ops), mods, comment
        self.label = None; self.target = None; self.passes = 0
        self.dst = set(); self.src = set(); self.srcC = set(); self.stdata = set(); self.dpp = False
        self.nopn = 1; self.lanesel = set(); self.D = None
        self.classify()
    def classify(self):
        op, ops = self.op, self.ops
        if op == "LABEL":
            self.cls = "label"; self.nopn = 0; return
        if op == "RAW":
            self.cls = "raw"; self.nopn = 0; return
        if op.startswith("v_smfmac"):
            self.cls = "mfma"
            self.passes = 8 if "32x32x32" in op else 4 if "16x16x64" in op else None
            assert self.passes, op
            self.dst = rset(ops[0]); self.src = rset(ops[1]) | rset(ops[2]) | rset(ops[3]); self.srcC = rset(ops[0])
            self.D = str(ops[0])
            return
        if op.startswith("v_mfma"):
            self.cls = "mfma"
            self.passes = 8 if "32x32x16" in op else 4 if "16x16x32" in op else None
            assert self.passes, op
            self.dst = rset(ops[0]); self.src = rset(ops[1]) | rset(ops[2]); self.srcC = rset(ops[3])
            self.D = str(ops[0])
            return
        if op.startswith("v_"):
            self.cls = "trans" if op.split("_e")[0] in TRANS or op in TRANS else "valu"
            if op.startswith("v_cmpx"):
                self.dst = {"exec"} | rset(ops[0]) if str(ops[0]) in ("vcc", "exec") or (hasattr(ops[0], 'k') and ops[0].k == 's' and len(ops) == 3) else {"exec"}
                self.src = set().union(*[rset(o) for o in ops[-2:]])
            elif op.startswith("v_permlane32_swap") or op.startswith("v_permlane16_swap") or op.startswith("v_swap"):
                self.dst = rset(ops[0]) | rset(ops[1]); self.src = set(self.dst); self.dpp = True
            elif op.startswith(("v_add_co", "v_sub_co", "v_subrev_co", "v_addc_co", "v_subb_co")):
                self.dst = rset(ops[0]) | rset(ops[1]); self.src = set().union(*[rset(o) for o in ops[2:]])
            elif op == "v_nop":
                pass
            else:
                self.dst = rset(ops[0]); self.src = set().union(*[rset(o) for o in ops[1:]]) if len(ops) > 1 else set()
                if op.startswith(("v_fmac", "v_mac", "v_dot2c", "v_pk_fmac", "v_writelane")):
                    self.src |= self.dst
                if op.startswith("v_cndmask") and len(ops) == 3:
                    self.src |= {"vcc"}
                if op.startswith(("v_readlane", "v_writelane")):
                    self.lanesel = rset(ops[2])
                if op.startswith("v_permlane"):
                    self.dpp = True
            if "row_" in self.mods or "quad_perm" in self.mods or "wave_" in self.mods or "dpp" in op:
                self.dpp = True
                if "bound_ctrl" not in self.mods:
                    self.src |= self.dst
            return
        if op.startswith("ds_"):
            self.cls = "ds"
            if op.startswith(("ds_read", "ds_bpermute", "ds_permute", "ds_swizzle")) or "_rtn" in op:
                self.dst = rset(ops[0]); self.src = set().union(*[rset(o) for o in ops[1:]])
            else:
                self.src = set().union(*[rset(o) for o in ops])
            return
        if op.startswith(("buffer_", "global_", "flat_")):
            self.cls = "vmem"
            lds = re.search(r"\blds\b", self.mods) is not None or "_lds_" in op
            if "load" in op and not lds:
                self.dst = rset(ops[0]); self.src = set().union(*[rset(o) for o in ops[1:]])
            elif "atomic" in op and ("sc0" in self.mods):
                self.dst = rset(ops[0]); self.src = set().union(*[rset(o) for o in ops])
            else:
                self.src = set().union(*[rset(o) for o in ops])
                if lds:
                    self.src |= {"m0"}; self.cls = "vmem_lds"
                if "store" in op and ("x3" in op or "x4" in op):
                    self.stdata = rset(ops[0]) if op.startswith("buffer") else rset(ops[1])
            return
        if op.startswith("s_"):
            if op.startswith(("s_load", "s_buffer_load", "s_memtime", "s_memrealtime")):
                self.cls = "smem"; self.dst = rset(ops[0]); self.src = set().union(*[rset(o) for o in ops[1:]]) if len(ops) > 1 else set()
                return
            self.cls = "salu"
            if op == "s_nop":
                self.nopn = ops[0] + 1
            if op.startswith(("s_cbranch", "s_branch")):
                self.target = ops[0]
                return
            if op.startswith(NODST_S):
                self.src = set().union(*[rset(o) for o in ops]) if ops else set()
                return
            self.dst = rset(ops[0]); self.src = set().union(*[rset(o) for o in ops[1:]]) if len(ops) > 1 else set()
            if "saveexec" in op:
                self.dst |= {"exec"}
            return
        raise ValueError("unknown op " + op)
    def text(self):
        if self.op == "LABEL":
            return f"{self.label}:"
        if self.op == "RAW":
            return self.mods
        s = "  " + self.op
        if self.ops:
            s += " " + ", ".join(fmt(o) for o in self.ops)
        if self.mods:
            s += " " + self.mods
        if self.comment:
            s += "  ; " + self.comment
        return s

def is_v(r): return isinstance(r, tuple) and r[0] in "va"
def is_s(r): return (isinstance(r, tuple) and r[0] == 's') or r == "vcc"

def need(p, c):
    n = 0
    pv = p.cls in ("valu", "trans")
    cv = c.cls in ("valu", "trans")
    cmem = c.cls in ("vmem", "vmem_lds", "ds")
    if pv:
        pdv = {r for r in p.dst if is_v(r)}
        pds = {r for r in p.dst if is_s(r)}
        if c.cls == "mfma":
            if pdv & (c.src | c.srcC): n = max(n, 2)
            if "exec" in p.dst: n = max(n, 4)
        if cv:
            if p.cls == "trans" and c.cls != "trans" and pdv & c.src: n = max(n, 1)
            if c.op.startswith(("v_readlane", "v_readfirstlane")) and pdv & c.src: n = max(n, 1)
            if c.dpp and pdv & c.src: n = max(n, 2)
            if c.dpp and "exec" in p.dst: n = max(n, 5)
            if pds & c.src: n = max(n, 2)
            if pds & c.lanesel: n = max(n, 4)
            if "exec" in p.dst and c.op.startswith(("v_readlane", "v_readfirstlane", "v_writelane")): n = max(n, 4)
            if "exec" in p.dst and "exec" in c.src: n = max(n, 2)
            if ("op_sel" in p.mods or "sdwa" in p.op or "dst_sel" in p.mods) and pdv & (c.src | c.dst): n = max(n, 1)
        if c.cls in ("vmem", "vmem_lds") and pds & c.src: n = max(n, 5)
        if p.op.startswith("v_dot") and (cv or cmem or c.cls == "mfma") and pdv & (c.src | c.dst | c.srcC):
            same = c.op == p.op and not (pdv & (rset(c.ops[1]) | rset(c.ops[2])))
            if not same: n = max(n, 3)
    if p.cls == "mfma":
        big = p.passes + 4
        if c.cls == "mfma":
            if p.dst & c.src: n = max(n, big)
            if p.dst & c.srcC:
                if not (p.dst == c.srcC and p.passes == c.passes): n = max(n, p.passes + 2)
            elif p.dst & c.dst and not (p.passes <= c.passes):
                n = max(n, big)
        if (cv or cmem) and p.dst & (c.src | c.dst): n = max(n, big)
        if cv and p.srcC & c.dst: n = max(n, p.passes - 1)
    if p.cls == "salu" and "m0" in p.dst and c.cls == "vmem_lds": n = max(n, 1)
    if p.stdata:
        if cv and p.stdata & c.dst: n = max(n, 2)
        elif p.stdata & c.dst: n = max(n, 1)
    return n

MAXWS = 12

def pad_hazards(code):
    total = 0
    for _pass in range(6):
        changed = False
        labels = {ins.label: i for i, ins in enumerate(code) if ins.op == "LABEL"}
        jumps = {}
        for i, ins in enumerate(code):
            if ins.target is not None:
                jumps.setdefault(str(ins.target), []).append(i)
        def preds(i):
            out = []
            if i > 0 and not (code[i - 1].op in ("s_branch", "s_endpgm")):
                out.append(i - 1)
            if code[i].op == "LABEL":
                out += jumps.get(code[i].label, [])
            return out
        i = 0
        new = []
        inserts = {}
        for i, c in enumerate(code):
            if c.cls in ("label", "raw", "salu", "smem"):
                continue
            worst = 0
            stack = [(j, 0) for j in preds(i)]
            seen = {}
            while stack:
                j, d = stack.pop()
                if seen.get(j, 99) <= d: continue
                seen[j] = d
                p = code[j]
                if p.cls not in ("label", "raw"):
                    nn = need(p, c)
                    if nn > d: worst = max(worst, nn - d)
                d2 = d + p.nopn + inserts.get(j, 0)
                if d2 < MAXWS:
                    for q in preds(j): stack.append((q, d2))
            if worst:
                inserts[i] = worst
        if not inserts:
            break
        out = []
        for i, c in enumerate(code):
            if i in inserts:
                n = inserts[i]; total += 1
                if out and out[-1].op == "s_nop" and out[-1].ops[0] + n <= 15:
                    out[-1] = Ins("s_nop", [out[-1].ops[0] + n])
                else:
                    out.append(Ins("s_nop", [n - 1], comment="hz"))
            out.append(c)
        code[:] = out
    return total

class Kernel:
    def __init__(self, name, grid, block, lds):
        self.name, self.grid, self.block, self.lds = name, grid, block, lds
        self.code = []
        self.vfree = [True] * 256; self.afree = [True] * 256; self.sfree = [True] * 102
        self.vfree[0] = False
        for j in range(3): self.sfree[j] = False
        self.vmax = 1; self.amax = 0; self.smax = 3
        self.nlab = 0
        self.nds = 0; self.nvm = 0; self.ds_done = 0; self.vm_done = 0
    def _alloc(self, free, n, align, k):
        for i in range(0, len(free) - n + 1, align):
            if all(free[i:i + n]):
                for j in range(i, i + n): free[j] = False
                return R(k, i, n)
        raise RuntimeError(f"out of {k} regs in {self.name}")
    def v(self, n=1, align=None):
        r = self._alloc(self.vfree, n, align or (2 if n > 1 else 1), 'v'); self.vmax = max(self.vmax, r.i + n); return r
    def a(self, n=1, align=None):
        r = self._alloc(self.afree, n, align or (2 if n > 1 else 1), 'a'); self.amax = max(self.amax, r.i + n); return r
    def s(self, n=1, align=None):
        r = self._alloc(self.sfree, n, align or (4 if n >= 4 else 2 if n == 2 else 1), 's'); self.smax = max(self.smax, r.i + n); return r
    def free(self, *rs):
        for r in rs:
            f = {'v': self.vfree, 'a': self.afree, 's': self.sfree}[r.k]
            for j in range(r.i, r.i + r.n):
                assert not f[j]; f[j] = True
    def __call__(self, op, *ops, mods="", c=""):
        ins = Ins(op, ops, mods, c); self.code.append(ins)
        if ins.cls == "ds": self.nds += 1
        if ins.cls in ("vmem", "vmem_lds"): self.nvm += 1
        return ins
    def need(self, ds=None, vm=None):
        a = b = None
        if ds is not None and ds > self.ds_done:
            a = min(15, self.nds - ds); self.ds_done = self.nds - a
        if vm is not None and vm > self.vm_done:
            b = min(63, self.nvm - vm); self.vm_done = self.nvm - b
        if a is not None or b is not None:
            self.wait(vm=b, lgkm=a)
    def label(self, name=None):
        if name is None:
            name = f"{self.name}_L{self.nlab}"; self.nlab += 1
        ins = Ins("LABEL"); ins.label = name; self.code.append(ins); return name
    def newlabel(self, tag="L"):
        self.nlab += 1; return f"{self.name}_{tag}{self.nlab}"
    def raw(self, text):
        self.code.append(Ins("RAW", mods=text))
    def wait(self, vm=None, lgkm=None):
        parts = []
        if vm is not None: assert 0 <= vm <= 63; parts.append(f"vmcnt({vm})")
        if lgkm is not None: assert 0 <= lgkm <= 15; parts.append(f"lgkmcnt({lgkm})")
        self("s_waitcnt", mods=" ".join(parts))
    def srd(self, srd, base_pair, size, off=0):
        if off:
            self("s_add_u32", srd[0], base_pair[0], off)
            self("s_addc_u32", srd[1], base_pair[1], 0)
        elif srd[0].i != base_pair[0].i:
            self("s_mov_b32", srd[0], base_pair[0]); self("s_mov_b32", srd[1], base_pair[1])
        self("s_mov_b32", srd[2], size)
        self("s_mov_b32", srd[3], 0x00020000)
    def stamp(self, real=False):
        if not getattr(self, "prof", False): return
        if not hasattr(self, "stamps"): self.stamps = []
        r = self.s(2); self.stamps.append(r)
        self("s_memrealtime" if real else "s_memtime", r)
    def dump_stamps(self, s_w, wgsel=None):
        if not getattr(self, "prof", False): return
        p = self.s(2); a = self.v(); d = self.v()
        skip = self.newlabel("nodump")
        self("s_cmp_lg_u32", R('s', 2), self.prof_wg if wgsel is None else wgsel)
        self("s_cbranch_scc1", skip)
        woff = getattr(self, "prof_woff", 0)
        if woff: self("s_sub_u32", s_w, s_w, woff)
        self("s_cmp_gt_u32", s_w, 3)
        self("s_cbranch_scc1", skip)
        self("s_load_dwordx2", p, R('s', 0, 2), 56)
        self("s_lshl_b32", s_w, s_w, 6)
        self("v_mov_b32", a, s_w)
        self.wait(lgkm=0)
        for i, r in enumerate(self.stamps[:16]):
            self("v_mov_b32", d, r[0])
            self("global_store_dword", a, d, p, mods=f"offset:{4 * i}")
        self.label(skip)
    def tl_begin(self):
        if not getattr(self, "tl", None): return
        self.tl_s = self.s(2)
        self("s_memrealtime", self.tl_s)
    def tl_end(self, s_w):
        if not getattr(self, "tl", None): return
        e = self.s(2); p = self.s(2); a = self.v(); d = self.v(2)
        self("s_memrealtime", e)
        self("s_load_dwordx2", p, R('s', 0, 2), 64)
        self.wait(lgkm=0)
        self("s_lshl_b32", e[1], R('s', 2), 3)
        self("s_add_u32", e[1], e[1], s_w)
        self("s_lshl_b32", e[1], e[1], 3)
        self("s_add_u32", e[1], e[1], (32 << 20) + (self.tl - 1) * 65536)
        self("v_mov_b32", a, e[1])
        self("v_mov_b32", d[0], self.tl_s[0])
        self("v_mov_b32", d[1], e[0])
        self("global_store_dwordx2", a, d, p)
    def finish(self):
        n = pad_hazards(self.code)
        body = "\n".join(i.text() for i in self.code)
        acc = (self.vmax + 3) // 4 * 4
        nfv = acc + self.amax if self.amax else self.vmax
        text = f".globl {self.name}\n.p2align 8\n.type {self.name},@function\n{self.name}:\n{body}\n"
        desc = (f".p2align 6\n.amdhsa_kernel {self.name}\n  .amdhsa_next_free_vgpr {nfv}\n  .amdhsa_next_free_sgpr 102\n"
                f"  .amdhsa_accum_offset {acc}\n  .amdhsa_group_segment_fixed_size 0\n  .amdhsa_kernarg_size 72\n"
                f"  .amdhsa_user_sgpr_count 2\n  .amdhsa_user_sgpr_kernarg_segment_ptr 1\n"
                f"  .amdhsa_system_sgpr_workgroup_id_x 1\n.end_amdhsa_kernel\n")
        launch = f"; @launch kernel={self.name} grid=({self.grid},1,1) block=({self.block},1,1) lds={self.lds}"
        info = f"{self.name}: vgpr={self.vmax} agpr={self.amax} sgpr={self.smax} instrs={len(self.code)} nops={n}"
        return text, desc, launch, info

HEADER = """; Kernarg layout for this problem (72 bytes, ptrs only, base s[0:1]):
"""

def build_file(kernels, path):
    parts = [k.finish() for k in kernels]
    s = HEADER + "\n".join(p[2] for p in parts) + "\n"
    s += '.amdgcn_target "amdgcn-amd-amdhsa--gfx950"\n.text\n'
    s += "".join(p[0] for p in parts)
    s += '.section .rodata,"a"\n' + "".join(p[1] for p in parts)
    open(path, "w").write(s)
    for p in parts: print(p[3])
```
